```python
import torch

def _softmax(x, axis=-1):
    return torch.softmax(x, dim=axis)

def _gelu(x):
    return torch.nn.functional.gelu(x, approximate='tanh')

def _silu(x):
    return torch.nn.functional.silu(x)

def _sigmoid(x):
    return torch.sigmoid(x)

def _layernorm(x, axis=-1, eps=1e-05):
    m = x.mean(dim=axis, keepdim=True)
    v = x.var(dim=axis, keepdim=True, unbiased=False)
    return (x - m) / torch.sqrt(v + eps)

def _scatter_add(tgt, idx, src, axis=0):
    return tgt.clone().index_add_(axis, idx, src)

def _segment_sum(src, seg, n):
    out = torch.zeros((n,) + src.shape[1:], dtype=src.dtype)
    return out.index_add_(0, seg, src)

def _pad(x, pw):
    flat = tuple((v for pair in reversed(pw) for v in pair))
    return torch.nn.functional.pad(x, flat)
kernel_name = 'adaLN_cond__compressed_kv_cla__geglu_ffn__prompt'

def setup_inputs():

    _w = lambda a: (lambda t: t.to(torch.bfloat16) if t.is_floating_point() else t)(torch.as_tensor(a))

    def _A_setup():
        B, H, Sq, Sk, D, M = (1, 32, 2048, 2048, 128, 512)
        Dc = 4 * D
        return {'x': _w((lambda *s: torch.randn(*s, dtype=torch.bfloat16) * 0.05)(B, Sq, M)), 'c_kv': _w((lambda *s: torch.randn(*s, dtype=torch.bfloat16) * 1.6)(B, Sk, Dc)), 'w_q': _w((lambda *s: torch.randn(*s, dtype=torch.bfloat16) * 0.8)(M, H, D) * M ** (-0.5)), 'w_uk': _w((lambda *s: torch.randn(*s, dtype=torch.bfloat16) * 0.8)(Dc, H, D) * Dc ** (-0.5)), 'w_uv': _w((lambda *s: torch.randn(*s, dtype=torch.bfloat16) * 1.6)(Dc, H, D) * Dc ** (-0.5)), 'w_o': _w((lambda *s: torch.randn(*s, dtype=torch.bfloat16) * 1.6)(H, D, M) * (H * D) ** (-0.5))}
    _A_in = _A_setup()

    def _B_setup():
        B, S, D, F = (1, 2048, 512, 1792)
        return {'x': _w((lambda *s: torch.randn(*s, dtype=torch.bfloat16) * 0.05)(B, S, D)), 'w_gate': _w((lambda *s: torch.randn(*s, dtype=torch.bfloat16) * 0.05)(D, F)), 'w_up': _w((lambda *s: torch.randn(*s, dtype=torch.bfloat16) * 0.05)(D, F)), 'w_down': _w((lambda *s: torch.randn(*s, dtype=torch.bfloat16) * 0.05)(F, D))}
    _B_in = _B_setup()
    return {'A_x': _A_in['x'], 'A_c_kv': _A_in['c_kv'], 'A_w_q': _A_in['w_q'], 'A_w_uk': _A_in['w_uk'], 'A_w_uv': _A_in['w_uv'], 'A_w_o': _A_in['w_o'], 'B_x': _B_in['x'], 'B_w_gate': _B_in['w_gate'], 'B_w_up': _B_in['w_up'], 'B_w_down': _B_in['w_down'], 'c': _w((lambda *s: torch.randn(*s, dtype=torch.bfloat16) * 0.1)(1, 512) * 8.0), 'w_mod': _w((lambda *s: torch.randn(*s, dtype=torch.bfloat16) * 0.1)(512, 6 * 512) * 512 ** (-0.5) * 8.0)}

def reference(A_x, A_c_kv, A_w_q, A_w_uk, A_w_uv, A_w_o, B_x, B_w_gate, B_w_up, B_w_down, c, w_mod):

    def _A_ref(x, c_kv, w_q, w_uk, w_uv, w_o):
        B, Sq, M = (x.shape[0], x.shape[1], x.shape[2])
        Sk = c_kv.shape[1]
        H, D = (w_q.shape[1], w_q.shape[2])
        q = torch.einsum('bqm,mhd->bhqd', x, w_q)
        k = torch.einsum('bkc,chd->bhkd', c_kv, w_uk)
        v = torch.einsum('bkc,chd->bhkd', c_kv, w_uv)
        scores = torch.einsum('bhqd,bhkd->bhqk', q, k) * D ** (-0.5)
        off = Sk - Sq
        qi = torch.arange(Sq)[:, None]
        kj = torch.arange(Sk)[None, :]
        cmask = kj <= qi + off
        scores = torch.where(cmask[None, None], scores, -1000000000.0)
        p = _softmax(scores, axis=-1)
        ctx = torch.einsum('bhqk,bhkd->bhqd', p, v)
        return torch.einsum('bhqd,hdm->bqm', ctx, w_o)

    def _B_ref(x, w_gate, w_up, w_down):
        return _gelu(x @ w_gate) * (x @ w_up) @ w_down
    x = A_x
    mod = (_silu(c) @ w_mod).reshape(c.shape[0], 6, 1, -1)
    sa, ca, ga, sb, cb, gb = (mod[:, 0].clone(), mod[:, 1].clone(), mod[:, 2].clone(), mod[:, 3].clone(), mod[:, 4].clone(), mod[:, 5].clone())
    h = _layernorm(x, axis=-1) * (1 + ca) + sa
    x = x + ga * _A_ref(h, A_c_kv, A_w_q, A_w_uk, A_w_uv, A_w_o)
    h = _layernorm(x, axis=-1) * (1 + cb) + sb
    x = x + gb * _B_ref(h, B_w_gate, B_w_up, B_w_down)
    return x
```

```python
class Kern:
    def __init__(self, name):
        self.name = name
        self.lines = []
        self.nv = 0
        self.na = 0
        self.ns = 0
        self._lab = 0
    def e(self, s):
        for l in s.split("\n"):
            self.lines.append("    " + l.strip())
    def c(self, s):
        self.lines.append("    ; " + s)
    def label(self, l):
        self.lines.append(l + ":")
    def newlabel(self, base="L"):
        self._lab += 1
        return f"{self.name}_{base}{self._lab}"
    def nop(self, n):
        while n > 0:
            k = min(n, 16)
            self.e(f"s_nop {k-1}")
            n -= k
    def text(self, nvgpr, nsgpr, accum_offset=None, nagpr=0):
        if accum_offset is None:
            accum_offset = (nvgpr + 3) // 4 * 4
        total = accum_offset + nagpr if nagpr else nvgpr
        out = []
        out.append(f".globl {self.name}\n.p2align 8\n.type {self.name},@function\n{self.name}:")
        out.extend(self.lines)
        out.append("    s_endpgm")
        code = "\n".join(out)
        desc = (f'.amdhsa_kernel {self.name}\n  .amdhsa_next_free_vgpr {total}\n  .amdhsa_next_free_sgpr {nsgpr}\n'
                f'  .amdhsa_accum_offset {accum_offset}\n  .amdhsa_group_segment_fixed_size 0\n  .amdhsa_kernarg_size 120\n'
                f'  .amdhsa_user_sgpr_count 2\n  .amdhsa_user_sgpr_kernarg_segment_ptr 1\n  .amdhsa_system_sgpr_workgroup_id_x 1\n'
                f'.end_amdhsa_kernel')
        return code, desc

def v(i, n=1):
    return f"v{i}" if n == 1 else f"v[{i}:{i+n-1}]"
def a(i, n=1):
    return f"a{i}" if n == 1 else f"a[{i}:{i+n-1}]"
def s(i, n=1):
    return f"s{i}" if n == 1 else f"s[{i}:{i+n-1}]"

def srd(k, d, base, nbytes, add=0):
    if add:
        k.e(f"s_add_u32 s{d}, s{base}, {add}")
        k.e(f"s_addc_u32 s{d+1}, s{base+1}, 0")
    else:
        k.e(f"s_mov_b32 s{d}, s{base}")
        k.e(f"s_mov_b32 s{d+1}, s{base+1}")
    k.e(f"s_mov_b32 s{d+2}, {nbytes}")
    k.e(f"s_mov_b32 s{d+3}, 0x00020000")

HEADER = open("adaLN_cond__compressed_kv_cla__geglu_ffn__prompt.s.ref").read().split("; Override launch")[0]

def assemble_file(kernels, launches):
    out = [HEADER.rstrip("\n")]
    for (name, grid, block, lds) in launches:
        out.append(f"; @launch kernel={name} grid=({grid},1,1) block=({block},1,1) lds={lds}")
    out.append('.amdgcn_target "amdgcn-amd-amdhsa--gfx950"\n.text')
    for code, desc in kernels:
        out.append(code)
    out.append('.section .rodata,"a"\n.p2align 6')
    for code, desc in kernels:
        out.append(desc)
        out.append(".p2align 6")
    return "\n".join(out) + "\n"
```

```python
from ag import *
from layout import *

ST = "sc1"

def dma_rows(k, voffs, srd, soff, m0base, n, lds_stride=1024):
    pass

def gen_kv(store_flags=ST):
    k = Kern("kv_kernel")
    WF = 128; ACC = [96, 112]; CF = 64; NCF = 8; PK = 56
    VTR = 2; VWD = 3; VST = 4; VRD = 8; VCD = 16
    CB = [0, 65536]; EX = 131072
    k.e("s_cmp_ge_u32 s2, 256\ns_cbranch_scc1 kv_kernel_end")
    k.e(f"s_load_dwordx2 s[4:5], s[0:1], {KA_CKV}")
    k.e(f"s_load_dwordx4 s[24:27], s[0:1], {KA_WUK}")
    k.e(f"s_load_dwordx2 s[8:9], s[0:1], {KA_WS}")
    k.e("v_and_b32 v1, 63, v0\nv_lshrrev_b32 v5, 6, v0\ns_nop 0\nv_readfirstlane_b32 s30, v5")
    k.e("s_and_b32 s31, s30, 3\ns_lshr_b32 s32, s30, 2")
    k.e("s_and_b32 s33, s2, 7\ns_lshr_b32 s34, s2, 3\ns_and_b32 s35, s34, 7\ns_lshl_b32 s33, s33, 3\ns_add_u32 s33, s33, s35")
    k.e("s_lshr_b32 s34, s34, 3")
    k.e("s_and_b32 s35, s33, 31\ns_lshr_b32 s36, s33, 5")
    k.e("s_waitcnt lgkmcnt(0)")
    k.e("s_cmp_eq_u32 s36, 0\ns_cselect_b32 s6, s24, s26\ns_cselect_b32 s7, s25, s27")
    srd(k, 12, 4, 2*MB)
    srd(k, 16, 6, 4*MB)
    srd(k, 20, 8, 32*MB, add=WS_KV)
    k.e("v_lshrrev_b32 v5, 4, v1\nv_and_b32 v6, 15, v1\nv_lshlrev_b32 v7, 2, v5\nv_xor_b32 v6, v6, v7\nv_lshlrev_b32 v6, 4, v6")
    k.e(f"v_lshlrev_b32 v5, 13, v5\nv_add_u32 v{VWD}, v5, v6")
    k.e("v_and_b32 v5, 15, v1\nv_lshrrev_b32 v6, 2, v5\nv_and_b32 v7, 3, v5")
    k.e("v_lshrrev_b32 v5, 5, v1\nv_lshlrev_b32 v5, 3, v5\nv_add_u32 v5, v5, v6\nv_lshlrev_b32 v5, 8, v5")
    k.e(f"v_xor_b32 v6, s31, v6\nv_lshlrev_b32 v6, 6, v6\nv_add_u32 v5, v5, v6")
    k.e("v_lshrrev_b32 v6, 4, v1\nv_and_b32 v6, 1, v6\nv_lshlrev_b32 v6, 5, v6\nv_add_u32 v5, v5, v6")
    k.e(f"v_lshlrev_b32 v7, 3, v7\nv_add_u32 v{VTR}, v5, v7")
    k.e("v_and_b32 v5, 31, v1\nv_lshrrev_b32 v6, 5, v1\nv_and_b32 v7, 15, v1")
    k.e("s_lshl_b32 s37, s32, 15\nv_lshlrev_b32 v5, 10, v5\nv_add_u32 v5, s37, v5")
    for b in range(8):
        k.e(f"v_add_u32 v{VRD+b}, {2*b}, v6\nv_xor_b32 v{VRD+b}, v{VRD+b}, v7\nv_lshlrev_b32 v{VRD+b}, 4, v{VRD+b}\nv_add_u32 v{VRD+b}, v{VRD+b}, v5")
    k.e("s_and_b32 s37, s30, 1\ns_lshl_b32 s37, s37, 3")
    for i in range(8):
        k.e(f"s_add_u32 s38, s37, {i}\nv_xor_b32 v{VCD+i}, s38, v1\nv_lshlrev_b32 v{VCD+i}, 4, v{VCD+i}")
    k.e(f"v_lshlrev_b32 v{VST}, 4, v1")
    k.e("s_lshl_b32 s40, s35, 8")
    k.e("s_lshl_b32 s41, s30, 17\ns_add_u32 s40, s40, s41")
    k.e("s_lshl_b32 s42, s30, 12")
    k.e("s_lshl_b32 s43, s34, 19\ns_lshl_b32 s41, s30, 13\ns_add_u32 s43, s43, s41")
    k.e("s_lshl_b32 s44, s30, 13")
    k.e("s_lshl_b32 s45, s35, 6\ns_lshl_b32 s41, s34, 4\ns_add_u32 s45, s45, s41\ns_add_u32 s45, s45, s32\ns_lshl_b32 s45, s45, 14")
    k.e("s_lshl_b32 s41, s36, 13\ns_add_u32 s45, s45, s41\ns_lshl_b32 s41, s31, 11\ns_add_u32 s45, s45, s41")

    def issueW(j, buf):
        for i in range(4):
            k.e(f"s_add_u32 m0, s42, {buf + i*1024}")
            k.e(f"s_add_u32 s46, s40, {j*128*8192 + i*4*8192}")
            k.e(f"buffer_load_dwordx4 v{VWD}, s[16:19], s46 offen lds")
    def issueC(t, buf):
        for h in range(2):
            k.e(f"s_add_u32 m0, s44, {buf + h*4096}")
            k.e(f"s_add_u32 s46, s43, {t*65536 + h*4096}")
            for i in range(4):
                k.e(f"buffer_load_dwordx4 v{VCD+4*h+i}, s[12:15], s46 offen offset:{i*1024} lds")
    def trW(j, buf):
        for sl in range(8):
            for jj in range(2):
                r = WF + (8*j+sl)*4 + 2*jj
                k.e(f"ds_read_b64_tr_b16 v[{r}:{r+1}], v{VTR} offset:{buf + (16*sl+4*jj)*256 - (65536 if buf >= 65536 else 0)}")
    def cread(sl, slot):
        aa, b = sl >> 3, sl & 7
        k.e(f"ds_read_b128 v[{CF+4*slot}:{CF+4*slot+3}], v{VRD+b} offset:{aa*256}")
    def mfma(isV, acc, sl, slot, first):
        w = f"v[{WF+4*sl}:{WF+4*sl+3}]"; c = f"v[{CF+4*slot}:{CF+4*slot+3}]"
        A, B = (c, w) if isV else (w, c)
        k.e(f"v_mfma_f32_32x32x16_bf16 v[{acc}:{acc+15}], {A}, {B}, " + ("0" if first else f"v[{acc}:{acc+15}]"))
    def epilogue(acc, t):
        for i in range(8):
            k.e(f"v_cvt_pk_bf16_f32 v{PK+i}, v{acc+2*i}, v{acc+2*i+1}")
        k.e(f"s_add_u32 s47, s45, {t*32768}")
        k.e(f"buffer_store_dwordx4 v[{PK}:{PK+3}], v{VST}, s[20:23], s47 offen {store_flags}")
        k.e(f"buffer_store_dwordx4 v[{PK+4}:{PK+7}], v{VST}, s[20:23], s47 offen offset:1024 {store_flags}")

    def run_slabs(isV, acc, s0, s1, first, extra=None, PF=6):
        n = s1 - s0
        for q in range(min(PF, n)): cread(s0+q, (s0+q) % NCF)
        for q in range(n):
            sl = s0 + q
            if q + PF < n: cread(sl+PF, (sl+PF) % NCF)
            rem = min(PF, n-1-q)
            k.e(f"s_waitcnt lgkmcnt({rem})")
            mfma(isV, acc, sl, sl % NCF, first and q == 0)
            if extra and sl in extra: extra[sl]()

    def toggle():
        for b in range(8): k.e(f"v_xor_b32 v{VRD+b}, 0x10000, v{VRD+b}")

    def body(isV):
        k.e(f"v_add_u32 v5, 0x10000, v{VTR}")
        VTRH = 5
        def trW2(j, buf):
            base = VTR if buf < 65536 else VTRH
            off0 = buf if buf < 65536 else buf - 65536
            for sl in range(8):
                for jj in range(2):
                    r = WF + (8*j+sl)*4 + 2*jj
                    k.e(f"ds_read_b64_tr_b16 v[{r}:{r+1}], v{base} offset:{off0 + (16*sl+4*jj)*256}")
        k.e(f"v_add_u32 v6, 0x20000, v{VTR}")
        def trWx(j):
            for sl in range(8):
                for jj in range(2):
                    r = WF + (8*j+sl)*4 + 2*jj
                    k.e(f"ds_read_b64_tr_b16 v[{r}:{r+1}], v6 offset:{(16*sl+4*jj)*256}")
        issueW(0, EX); issueC(0, CB[0]); issueW(1, CB[1]); issueW(2, CB[1]+32768)
        k.e("s_waitcnt vmcnt(8)\ns_barrier")
        trWx(0)
        k.e("s_waitcnt lgkmcnt(0)")
        run_slabs(isV, ACC[0], 0, 8, True)
        k.e("s_waitcnt vmcnt(0)\ns_barrier")
        issueW(3, EX)
        trW2(1, CB[1]); trW2(2, CB[1]+32768)
        k.e("s_waitcnt lgkmcnt(0)")
        run_slabs(isV, ACC[0], 8, 16, False)
        k.e("s_barrier")
        issueC(1, CB[1])
        run_slabs(isV, ACC[0], 16, 24, False)
        k.e("s_waitcnt vmcnt(8)\ns_barrier")
        trWx(3)
        k.e("s_waitcnt lgkmcnt(0)")
        run_slabs(isV, ACC[0], 24, 32, False)
        for t in range(1, 8):
            toggle()
            k.e(f"s_waitcnt vmcnt({0 if t == 1 else 2})\ns_barrier")
            if t < 7: issueC(t+1, CB[(t+1) & 1])
            run_slabs(isV, ACC[t & 1], 0, 32, True, extra={6: (lambda tt=t: epilogue(ACC[(tt-1) & 1], tt-1))})
        k.nop(16)
        epilogue(ACC[1], 7)

    k.e("s_cmp_eq_u32 s36, 0\ns_cbranch_scc0 kv_kernel_V")
    body(False)
    k.e("s_branch kv_kernel_end")
    k.label("kv_kernel_V")
    body(True)
    k.label("kv_kernel_end")
    return k.text(256, 64)
```

```python
from ag import *
from layout import *

def wave_allreduce_add(k, vr, tmp, sb):
    for ctl in ["quad_perm:[1,0,3,2]", "quad_perm:[2,3,0,1]", "row_half_mirror", "row_mirror"]:
        k.e("s_nop 1")
        k.e(f"v_add_f32_dpp v{vr}, v{vr}, v{vr} {ctl} row_mask:0xf bank_mask:0xf")
    k.e("s_nop 1")
    for i in range(4):
        k.e(f"v_readlane_b32 s{sb+i}, v{vr}, {16*i}")
    k.e("s_nop 1")
    k.e(f"v_mov_b32 v{vr}, s{sb}")
    for i in range(1, 4):
        k.e(f"v_add_f32 v{vr}, s{sb+i}, v{vr}")

def unpack_bf16(k, src, dst_lo, dst_hi):
    k.e(f"v_lshlrev_b32 v{dst_lo}, 16, v{src}")
    k.e(f"v_and_b32 v{dst_hi}, 0xffff0000, v{src}")

def gen_mod():
    k = Kern("mod_kernel")
    k.e("s_cmp_ge_u32 s2, 48\ns_cbranch_scc1 mod_kernel_end")
    k.e(f"s_load_dwordx4 s[4:7], s[0:1], {KA_C}")
    k.e(f"s_load_dwordx2 s[8:9], s[0:1], {KA_WS}")
    k.e("v_and_b32 v1, 7, v0")
    k.e("v_lshrrev_b32 v2, 3, v0")
    k.e("v_lshlrev_b32 v3, 4, v2")
    k.e("s_waitcnt lgkmcnt(0)")
    k.e("global_load_dwordx4 v[4:7], v3, s[4:5]")
    k.e("s_mov_b32 s10, 49152\nv_mul_lo_u32 v3, v2, s10")
    k.e("v_lshlrev_b32 v8, 4, v1\nv_add_u32 v3, v3, v8")
    k.e("s_lshl_b32 s11, s2, 7\nv_add_u32 v3, s11, v3")
    for i in range(8):
        k.e(f"global_load_dwordx4 v[{16+4*i}:{19+4*i}], v3, s[6:7]")
        if i < 7: k.e("v_add_u32 v3, 6144, v3")
    k.e("s_waitcnt vmcnt(8)")
    for i in range(4):
        unpack_bf16(k, 4+i, 48+2*i, 49+2*i)
    for i in range(8):
        k.e(f"v_mul_f32 v{56+i}, 0xbfb8aa3b, v{48+i}")
    for i in range(8):
        k.e(f"v_exp_f32 v{56+i}, v{56+i}")
    k.e("s_nop 0")
    for i in range(8):
        k.e(f"v_add_f32 v{56+i}, 1.0, v{56+i}")
    for i in range(8):
        k.e(f"v_rcp_f32 v{56+i}, v{56+i}")
    k.e("s_nop 0")
    for i in range(8):
        k.e(f"v_mul_f32 v{48+i}, v{48+i}, v{56+i}")
    for i in range(4):
        k.e(f"v_cvt_pk_bf16_f32 v{56+i}, v{48+2*i}, v{49+2*i}")
    for i in range(4):
        unpack_bf16(k, 56+i, 48+2*i, 49+2*i)
    for j in range(8): k.e(f"v_mov_b32 v{64+j}, 0")
    for i in range(8):
        k.e(f"s_waitcnt vmcnt({7-i})")
        for q in range(4):
            unpack_bf16(k, 16+4*i+q, 72, 73)
            k.e(f"v_fmac_f32 v{64+2*q}, v72, v{48+i}")
            k.e(f"v_fmac_f32 v{65+2*q}, v73, v{48+i}")
    k.e("v_lshlrev_b32 v8, 8, v2\nv_lshlrev_b32 v9, 5, v1\nv_add_u32 v8, v8, v9")
    k.e("ds_write_b128 v8, v[64:67]\nds_write_b128 v8, v[68:71] offset:16")
    k.e("s_waitcnt lgkmcnt(0)\ns_barrier")
    k.e("v_and_b32 v1, 63, v0\nv_lshrrev_b32 v2, 6, v0")
    k.e("v_lshlrev_b32 v8, 11, v2\nv_lshlrev_b32 v9, 2, v1\nv_add_u32 v8, v8, v9")
    for i in range(8):
        k.e(f"ds_read_b32 v{16+i}, v8 offset:{256*i}")
    k.e("s_waitcnt lgkmcnt(0)")
    for i in range(1, 8):
        k.e(f"v_add_f32 v16, v16, v{16+i}")
    k.e("s_barrier")
    k.e("v_lshlrev_b32 v8, 8, v2\nv_add_u32 v8, v8, v9")
    k.e("ds_write_b32 v8, v16")
    k.e("s_waitcnt lgkmcnt(0)\ns_barrier")
    k.e("v_cmp_gt_u32 vcc, 64, v0\ns_and_saveexec_b64 s[12:13], vcc\ns_cbranch_execz mod_kernel_end")
    for i in range(8):
        k.e(f"ds_read_b32 v{16+i}, v9 offset:{256*i}")
    k.e("s_waitcnt lgkmcnt(0)")
    for i in range(1, 8):
        k.e(f"v_add_f32 v16, v16, v{16+i}")
    k.e("s_lshl_b32 s11, s2, 8\nv_add_u32 v9, s11, v9")
    k.e("global_store_dword v9, v16, s[8:9]")
    k.label("mod_kernel_end")
    return k.text(80, 24)

def emit_ln_row(k, xv, tmp, sb, eps_s):
    t0, t1 = tmp, tmp+1
    k.e(f"v_add_f32 v{t0}, v{xv}, v{xv+1}")
    for i in range(2, 8): k.e(f"v_add_f32 v{t0}, v{t0}, v{xv+i}")
    wave_allreduce_add(k, t0, t1, sb)
    k.e(f"v_mul_f32 v{t0}, 0x3b000000, v{t0}")
    for i in range(8): k.e(f"v_sub_f32 v{xv+i}, v{xv+i}, v{t0}")
    k.e(f"v_mul_f32 v{t0}, v{xv}, v{xv}")
    for i in range(1, 8): k.e(f"v_fmac_f32 v{t0}, v{xv+i}, v{xv+i}")
    wave_allreduce_add(k, t0, t1, sb)
    k.e(f"v_mov_b32 v{t1}, 0x3727c5ac")
    k.e(f"v_fmac_f32 v{t1}, 0x3b000000, v{t0}")
    k.e(f"v_rsq_f32 v{t1}, v{t1}")
    k.e("s_nop 0")
    for i in range(8): k.e(f"v_mul_f32 v{xv+i}, v{xv+i}, v{t1}")

def gen_h():
    k = Kern("h_kernel")
    k.e("s_cmp_ge_u32 s2, 256\ns_cbranch_scc1 h_kernel_end")
    k.e(f"s_load_dwordx2 s[4:5], s[0:1], {KA_X}")
    k.e(f"s_load_dwordx2 s[8:9], s[0:1], {KA_WS}")
    k.e("v_lshrrev_b32 v1, 6, v0\nv_and_b32 v2, 63, v0")
    k.e("s_nop 0\nv_readfirstlane_b32 s10, v1")
    k.e("s_lshl_b32 s11, s2, 3\ns_add_u32 s11, s11, s10")
    k.e("s_lshl_b32 s12, s11, 10")
    k.e("v_lshlrev_b32 v3, 4, v2\nv_add_u32 v4, s12, v3")
    k.e("v_lshlrev_b32 v5, 5, v2")
    k.e("s_waitcnt lgkmcnt(0)")
    k.e("global_load_dwordx4 v[8:11], v4, s[4:5]")
    k.e("global_load_dwordx4 v[24:27], v5, s[8:9]")
    k.e("global_load_dwordx4 v[28:31], v5, s[8:9] offset:16")
    k.e("global_load_dwordx4 v[32:35], v5, s[8:9] offset:2048")
    k.e("global_load_dwordx4 v[36:39], v5, s[8:9] offset:2064")
    k.e("s_waitcnt vmcnt(4)")
    for i in range(4): unpack_bf16(k, 8+i, 16+2*i, 17+2*i)
    emit_ln_row(k, 16, 40, 16, None)
    k.e("s_waitcnt vmcnt(0)")
    for i in range(8):
        k.e(f"v_add_f32 v{32+i}, 1.0, v{32+i}")
        k.e(f"v_fma_f32 v{16+i}, v{16+i}, v{32+i}, v{24+i}")
    for i in range(4): k.e(f"v_cvt_pk_bf16_f32 v{8+i}, v{16+2*i}, v{17+2*i}")
    k.e("s_lshr_b32 s13, s11, 5\ns_lshl_b32 s13, s13, 15\ns_and_b32 s14, s11, 31\ns_lshl_b32 s14, s14, 4\ns_add_u32 s13, s13, s14")
    k.e(f"s_add_u32 s13, s13, {WS_H}")
    k.e("v_lshrrev_b32 v5, 1, v2\nv_lshlrev_b32 v5, 10, v5\nv_and_b32 v6, 1, v2\nv_lshlrev_b32 v6, 9, v6\nv_add_u32 v5, v5, v6\nv_add_u32 v5, s13, v5")
    k.e("global_store_dwordx4 v5, v[8:11], s[8:9]")
    k.label("h_kernel_end")
    return k.text(48, 24)
```

```python
MB = 1 << 20
WS_MOD = 0
WS_H = 1 * MB
WS_H2 = 3 * MB
WS_X1 = 5 * MB
WS_ACT = 9 * MB
WS_CTX = 17 * MB
WS_PART = 33 * MB
WS_KV = 49 * MB
WS_SIZE = 256 * MB
KA_X, KA_CKV, KA_WQ, KA_WUK, KA_WUV, KA_WO, KA_BX, KA_WG, KA_WU, KA_WD, KA_C, KA_WMOD, KA_OUT, KA_DBG, KA_WS = [8*i for i in range(15)]
```

```python
import sys
from ag import *
import k_pre, k_kv
def build(out="adaLN_cond__compressed_kv_cla__geglu_ffn__prompt.s"):
    ks = [k_pre.gen_mod(), k_pre.gen_h(), k_kv.gen_kv()]
    launches = [("mod_kernel", 48, 512, 16384), ("h_kernel", 256, 512, 0), ("kv_kernel", 256, 512, 163840)]
    open(out, "w").write(assemble_file(ks, launches))
if __name__ == "__main__":
    build(*sys.argv[1:])
```
